```python
import torch

def _softmax(x, axis=-1):
    return torch.softmax(x, dim=axis)
def _gelu(x):
    return torch.nn.functional.gelu(x, approximate="tanh")
def _silu(x):
    return torch.nn.functional.silu(x)
def _sigmoid(x):
    return torch.sigmoid(x)
def _layernorm(x, axis=-1, eps=1e-5):
    m = x.mean(dim=axis, keepdim=True)
    v = x.var(dim=axis, keepdim=True, unbiased=False)
    return (x - m) / torch.sqrt(v + eps)
def _scatter_add(tgt, idx, src, axis=0):
    return tgt.clone().index_add_(axis, idx, src)
def _segment_sum(src, seg, n):
    out = torch.zeros((n,) + src.shape[1:], dtype=src.dtype)
    return out.index_add_(0, seg, src)
def _pad(x, pw):
    flat = tuple(v for pair in reversed(pw) for v in pair)
    return torch.nn.functional.pad(x, flat)

kernel_name = 'standalone__gqa_block_cached__near_ridge'

def setup_inputs():

    _w = (lambda a: (lambda t: t.to(torch.bfloat16) if t.is_floating_point() else t)(torch.as_tensor(a)))
    B, Sq, D = 32, 48, 448
    Hq, Hkv, Sk, Dh = 16, 8, 512, 256
    assert Hq % Hkv == 0, (Hq, Hkv)
    return {
        "x": _w((lambda *s: torch.randn(*s, dtype=torch.bfloat16) * 0.8)(B, Sq, D)),
        "k_cache": _w((lambda *s: torch.randn(*s, dtype=torch.bfloat16) * 0.8)(B, Hkv, Sk, Dh)),
        "v_cache": _w((lambda *s: torch.randn(*s, dtype=torch.bfloat16) * 0.05)(B, Hkv, Sk, Dh)),
        "wq": _w((lambda *s: torch.randn(*s, dtype=torch.bfloat16) * 0.8)(D, Hq * Dh) * (D ** -0.5)),
        "wo": _w((lambda *s: torch.randn(*s, dtype=torch.bfloat16) * 0.05)(Hq * Dh, D) * ((Hq * Dh) ** -0.5)),
    }

def reference(x, k_cache, v_cache, wq, wo):
    B, Sq, D = x.shape
    Hq, Dh = 16, 256
    Hkv = k_cache.shape[1]
    rep = Hq // Hkv
    q = (lambda x, *d: x.permute(*d))((x @ wq).reshape(B, Sq, Hq, Dh), 0, 2, 1, 3)
    k = (lambda x, n, axis: torch.repeat_interleave(x, n, dim=axis))(k_cache, rep, axis=1)
    v = (lambda x, n, axis: torch.repeat_interleave(x, n, dim=axis))(v_cache, rep, axis=1)
    scores = torch.einsum("bhqd,bhkd->bhqk", q, k) * (Dh ** -0.5)
    p = _softmax(scores, axis=-1)
    o = torch.einsum("bhqk,bhkd->bhqd", p, v)
    return (lambda x, *d: x.permute(*d))(o, 0, 2, 1, 3).reshape(B, Sq, Hq * Dh) @ wo
```

```python
import re


def regs(spec):
    spec = spec.strip()
    if spec.startswith('-'):
        spec = spec[1:]
    m = re.fullmatch(r'([vas])\[(\d+):(\d+)\]', spec)
    if m:
        return [f'{m.group(1)}{i}' for i in range(int(m.group(2)), int(m.group(3)) + 1)]
    if re.fullmatch(r'[vas]\d+', spec) or spec in ('m0', 'vcc', 'exec', 'scc'):
        return [spec]
    return []


def R(f, n, cnt=1):
    return f'{f}{n}' if cnt == 1 else f'{f}[{n}:{n + cnt - 1}]'


class I:
    __slots__ = ('text', 'kind', 'rd', 'wr', 'srcc', 'after', 'needs', 'tagw', 'tagr', 'emitted', 'cost', 'meta')

    def __init__(self, text, kind, rd=(), wr=(), srcc=(), cost=4):
        self.text, self.kind = text, kind
        self.rd, self.wr, self.srcc = set(rd), set(wr), set(srcc)
        self.after = []
        self.needs = []
        self.tagw = None
        self.tagr = []
        self.emitted = False
        self.cost = cost
        self.meta = None


TRANS = ('v_exp_f32', 'v_rcp_f32', 'v_log_f32', 'v_rsq_f32', 'v_sqrt_f32')


def valu(op, dst, *src, rmw=False, extra=''):
    rd = []
    for s in src:
        rd += regs(str(s))
    wr = regs(dst)
    kind = 'trans' if op in TRANS else 'valu'
    if rmw:
        rd += wr
    if op.startswith('v_permlane'):
        kind = 'perm'
        wr = wr + regs(src[0])
        rd = list(wr)
    if op.startswith('v_readfirstlane') or op.startswith('v_readlane'):
        kind = 'readlane'
    if op.startswith('v_cndmask') and len(src) == 2:
        rd.append('vcc')
    txt = f'{op} {dst}, ' + ', '.join(str(s) for s in src) + (' ' + extra if extra else '')
    return I(txt, kind, rd, wr, cost=8 if kind == 'trans' else 4)


def salu(op, dst, *src):
    rd = []
    for s in src:
        rd += regs(str(s))
    wr = regs(dst)
    if op.startswith('s_cmp') or op.startswith('s_bitcmp'):
        rd += wr
        wr = []
    return I(f'{op} {dst}' + ''.join(', ' + str(s) for s in src), 'salu', rd, wr)


def mfma(d, a, b, c):
    return I(f'v_mfma_f32_16x16x32_bf16 {d}, {a}, {b}, {c}', 'mfma', regs(a) + regs(b) + regs(str(c)), regs(d),
             srcc=regs(str(c)), cost=16)


def dsr(op, dst, addr, off=0):
    assert 0 <= off < 65536, off
    return I(f'{op} {dst}, {addr}' + (f' offset:{off}' if off else ''), 'dsr', regs(addr), regs(dst))


def dsw(op, addr, data, off=0):
    assert 0 <= off < 65536, off
    return I(f'{op} {addr}, {data}' + (f' offset:{off}' if off else ''), 'dsw', regs(addr) + regs(data), [], cost=8)


def dma(voff, srd, soff, off=0, flags=''):
    assert 0 <= off < 4096
    t = f'buffer_load_dwordx4 {voff}, {srd}, {soff} offen' + (f' offset:{off}' if off else '') + \
        (f' {flags}' if flags else '') + ' lds'
    return I(t, 'dma', regs(voff) + regs(srd) + regs(str(soff)) + ['m0'], [], cost=8)


def bload(op, dst, voff, srd, soff, off=0, flags=''):
    assert 0 <= off < 4096
    t = f'{op} {dst}, {voff}, {srd}, {soff} offen' + (f' offset:{off}' if off else '') + (f' {flags}' if flags else '')
    return I(t, 'vload', regs(voff) + regs(srd) + regs(str(soff)), regs(dst), cost=8)


def bstore(op, data, voff, srd, soff, off=0, flags=''):
    assert 0 <= off < 4096
    t = f'{op} {data}, {voff}, {srd}, {soff} offen' + (f' offset:{off}' if off else '') + (f' {flags}' if flags else '')
    i = I(t, 'vstore', regs(data) + regs(voff) + regs(srd) + regs(str(soff)), [], cost=8)
    i.meta = set(regs(data)) if len(regs(data)) > 2 else set()
    return i


def raw(text, kind='other', rd=(), wr=()):
    return I(text, kind, rd, wr)


VALU_KINDS = ('valu', 'trans', 'perm', 'readlane')
VMEM_KINDS = ('dma', 'vload', 'vstore')


class Emitter:
    def __init__(self):
        self.lines = []
        self.ws = 0
        self.lastw = {}
        self.srcc_rd = {}
        self.store_rd = {}
        self.lds_q = []
        self.vm_q = []
        self.tags = {}
        self.nops = 0
        self.cost = 0
        self.count = {}

    def line(self, t):
        self.lines.append(t)

    def comment(self, t):
        self.lines.append('; ' + t)

    def label(self, name):
        self.lines.append(name + ':')

    def _put(self, text, n=1):
        self.lines.append('    ' + text)
        self.ws += n

    def wait(self, vm=None, lgkm=None):
        parts = []
        if vm is not None and vm < len(self.vm_q):
            vm = min(vm, 62)
            parts.append(f'vmcnt({vm})')
            self.vm_q = self.vm_q[len(self.vm_q) - vm:] if vm else []
        if lgkm is not None and lgkm < len(self.lds_q):
            lgkm = min(lgkm, 14)
            parts.append(f'lgkmcnt({lgkm})')
            self.lds_q = self.lds_q[len(self.lds_q) - lgkm:] if lgkm else []
        if parts:
            self._put('s_waitcnt ' + ' '.join(parts))
            self.cost += 4

    def wait_for_vm(self, instrs, lgkm=None):
        n = None
        for k, q in enumerate(self.vm_q):
            if q in instrs:
                n = len(self.vm_q) - 1 - k
        self.wait(vm=n, lgkm=lgkm)

    def barrier(self):
        self._put('s_barrier')
        self.cost += 4

    def emit(self, ins):
        if isinstance(ins, (list, tuple)):
            for x in ins:
                self.emit(x)
            return
        assert not ins.emitted, ins.text
        for n in ins.needs + ins.after:
            assert n.emitted, f'order violation: {ins.text} before {n.text}'
        touched = ins.rd | ins.wr
        lg = None
        for k, d in enumerate(self.lds_q):
            if d & touched:
                lg = len(self.lds_q) - 1 - k
        vm = None
        for k, q in enumerate(self.vm_q):
            if q.wr & touched:
                vm = len(self.vm_q) - 1 - k
        self.wait(vm=vm, lgkm=lg)
        for rs, tag in ins.tagr:
            for r in rs:
                assert self.tags.get(r) == tag, f'tag mismatch on {r}: have {self.tags.get(r)} want {tag} in {ins.text}'
        need = 0
        k = ins.kind

        def dist(req, idx):
            nonlocal need
            need = max(need, req - (self.ws - idx - 1))
        for r in ins.rd:
            if r not in self.lastw:
                continue
            wk, idx = self.lastw[r]
            if wk == 'mfma':
                if k == 'mfma':
                    if r not in ins.srcc:
                        dist(8, idx)
                else:
                    dist(8, idx)
            elif wk in VALU_KINDS:
                if r[0] in 'va' and r != 'vcc':
                    if k == 'mfma':
                        dist(2, idx)
                    if k == 'perm':
                        dist(2, idx)
                    if k == 'readlane':
                        dist(1, idx)
                    if wk == 'trans' and k in VALU_KINDS:
                        dist(1, idx)
                else:
                    if k in VMEM_KINDS:
                        dist(5, idx)
                    elif k in VALU_KINDS:
                        dist(2, idx)
                    else:
                        dist(2, idx)
            elif wk == 'salu' and r == 'm0' and k == 'dma':
                dist(1, idx)
        for r in ins.wr:
            if r in self.lastw:
                wk, idx = self.lastw[r]
                if wk == 'mfma' and not (k == 'mfma' and r in ins.srcc):
                    dist(8, idx)
            if k != 'mfma' and r in self.srcc_rd:
                dist(3, self.srcc_rd[r])
            if r in self.store_rd:
                dist(2, self.store_rd[r])
        if need > 0:
            self._put(f's_nop {need - 1}', need)
            self.nops += need
            self.cost += 4 * need
        idx = self.ws
        self._put(ins.text)
        self.cost += ins.cost
        self.count[k] = self.count.get(k, 0) + 1
        for r in ins.wr:
            self.lastw[r] = (k, idx)
            self.tags.pop(r, None)
        if k == 'mfma':
            for r in ins.srcc:
                self.srcc_rd[r] = idx
        if k == 'vstore':
            for r in ins.meta:
                self.store_rd[r] = idx
        if k == 'dsr':
            self.lds_q.append(set(ins.wr))
        elif k == 'dsw':
            self.lds_q.append(set())
        elif k in VMEM_KINDS:
            self.vm_q.append(ins)
        if ins.tagw:
            for r in ins.tagw[0]:
                self.tags[r] = ins.tagw[1]
        ins.emitted = True

    def text(self):
        return '\n'.join(self.lines) + '\n'
```

```python
import struct
import sys
from asmlib import *

NAME = 'standalone__gqa_block_cached__near_ridge'
SLOT = 16384
NSLOT = 8
EX = NSLOT * SLOT
OREG = 7168
LDS_BYTES = 163840
STAMP_OFF = 200 << 20

sX, sK, sV, sWQ, sWO, sWS = 4, 8, 12, 16, 20, 24
sOUT = 28
sKV1, sWQ1, sWO1 = 32, 35, 38
sWAVE, sWOFF = 41, 42
sC = 43
sT0, sT1, sT2, sT3 = 44, 45, 46, 47
sB, sH = 48, 49
sLC = 50
sDBG = 60
sSTAMP = 80
EXQ = [192 + 4 * i for i in range(9)]
vK, vV, vWQ, vWO = 228, 229, 230, 231
aK, aWQ, aV, aWO = 232, 234, 236, 240
aQw, aQr, aOw, aOp, aOr, vST = 241, 242, 243, 244, 245, 246
vM, vT = 248, 252
aX = 252
vX = 254
XF, QF, RING = 0, 168, 192
WOF, OF, ONES = 0, 112, 160


def srd(n):
    return f's[{n}:{n + 3}]'


def G(i, j, qt):
    return 8 * ((i * 2 + j) * 3 + qt)


def OACC(t, qt):
    k = t * 3 + qt
    return EXQ[k] if k < 9 else 8 * (k - 9) + 4


def LACC(qt):
    return 8 * (3 + qt) + 4


def OUTACC(lc, qt):
    return 8 * (3 + lc * 3 + qt) + 4


def fbits(x):
    return hex(struct.unpack('<I', struct.pack('<f', x))[0])


class Gen:
    def __init__(self, cfg):
        self.cfg = cfg
        self.E = Emitter()
        self.free = list(range(NSLOT))
        self.slot = {}
        self.dmas = {}
        self.fifo = []
        self.voff = {'K': 0, 'V': 0, 'W': 0, 'O': 0, 'X': 0}
        self.hi = {}
        self.ringpos = 0
        self.lastuse = {}
        self.carry = []
        self.vq = []
        self.nstamp = 0
        self.stamp_names = []
        self.issued = 0

    def unit_off(self, u):
        k = u[0]
        if k in 'KV':
            return u[2] * 65536 + u[1] * 128
        if k == 'W':
            return u[2] * 64 * 8192 + u[1] * 128
        if k == 'O':
            return u[1] * 64 * 896
        if k == 'X':
            return u[1] * 16 * 896

    def next_item(self):
        if not self.fifo:
            return None
        u, j = self.fifo[0]
        k = u[0]
        if k == 'P':
            self.fifo.pop(0)
            self.issued += 1
            return self.prewarm(u)
        out = []
        vr = f'v{dict(K=vK, V=vV, W=vWQ, O=vWO, X=vX)[k]}'
        if j == 0:
            if not self.free:
                return None
            self.slot[u] = self.free.pop(0)
            self.dmas[u] = []
            d = self.unit_off(u) - self.voff[k]
            if d:
                out.append(valu('v_add_u32', vr, hex(d & 0xffffffff), vr))
                self.voff[k] += d
            if k == 'O':
                out.append(valu('v_add_u32', f'v{vWQ}', f's{sLC + u[2]}', vr))
        if k == 'O':
            vr = f'v{vWQ}'
        base = self.slot[u] * SLOT
        flags = self.cfg['flags'][k]
        if k == 'X':
            out.append(salu('s_add_u32', 'm0', f's{sWOFF}', base + (1024 - 128) * j))
            dm = dma(vr, srd(sX), 0, 128 * j, flags)
        else:
            if j == 0:
                out.append(salu('s_add_u32', 'm0', f's{sWOFF}', base))
            c1 = dict(K=sKV1, V=sKV1, W=sWQ1, O=sWO1)[k]
            dm = dma(vr, srd(dict(K=sK, V=sV, W=sWQ, O=sWO)[k]), f's{c1 + j - 1}' if j else 0, 1024 * j, flags)
        out.append(dm)
        self.dmas[u].append(dm)
        self.fifo.pop(0)
        self.issued += 1
        return out

    def laddr(self, q, reg, off):
        w = off >> 16
        if self.hi.get(reg, 0) != w:
            q.append(valu('v_xor_b32', f'v{reg}', hex((self.hi.get(reg, 0) ^ w) << 16), f'v{reg}'))
            self.hi[reg] = w
        return off & 0xffff

    def alloc(self):
        b = RING + 4 * self.ringpos
        self.ringpos = (self.ringpos + 1) % 16
        return b

    def read_frag(self, q, kind, dst, areg, offs, tag):
        out = []
        if kind == 'b128':
            o = self.laddr(q, areg, offs[0])
            r = dsr('ds_read_b128', R('a', dst, 4), f'v{areg}', o)
            r.tagw = (regs(R('a', dst, 4)), tag)
            out = [r]
            q.append(r)
        else:
            for u in range(2):
                o = self.laddr(q, areg, offs[u])
                r = dsr('ds_read_b64_tr_b16', R('a', dst + 2 * u, 2), f'v{areg}', o)
                r.tagw = (regs(R('a', dst + 2 * u, 2)), tag)
                out.append(r)
                q.append(r)
        if dst in self.lastuse:
            for r in out:
                r.after.append(self.lastuse[dst])
        return out

    def mm(self, d, a, atag, b, btag, zero, needs=()):
        m = mfma(R('v', d, 4), a, b, 0 if zero else R('v', d, 4))
        m.tagr = [(regs(a), atag), (regs(b), btag)]
        m.needs = list(needs)
        for x in (a, b):
            if x[0] == 'a':
                self.lastuse[int(regs(x)[0][1:])] = m
        return m

    def body_X(self, reads, kss):
        rd = {}
        for ks in kss:
            lc, e = ks >> 1, ks & 1
            for qt in range(3):
                off = self.slot[('X', qt)] * SLOT + (lc >> 2) * 8192 + (lc & 3) * 1024
                rd[(ks, qt)] = self.read_frag(reads, 'b128', XF + (ks * 3 + qt) * 4, aX + e, [off], ('x', ks, qt))
        return rd

    def body_W(self, u, reads, mf):
        _, c, i = u
        base = self.slot[u] * SLOT
        for e in range(2):
            ks = 2 * i + e
            for t in range(2):
                f = self.alloc()
                rs = self.read_frag(reads, 'tr', f, aWQ + t, [base + e * 2048, base + e * 2048 + 512], ('w', c, ks, t))
                for qt in range(3):
                    mf.append(self.mm(EXQ[t * 3 + qt], R('a', f, 4), ('w', c, ks, t),
                                      R('a', XF + (ks * 3 + qt) * 4, 4), ('x', ks, qt), ks == 0,
                                      rs + self.xrd.get((ks, qt), [])))

    def q_write(self, c):
        out = []
        for t in range(2):
            for qt in range(3):
                b = EXQ[t * 3 + qt]
                out.append(valu('v_cvt_pk_bf16_f32', f'v{b}', f'v{b}', f'v{b + 1}'))
                out.append(valu('v_cvt_pk_bf16_f32', f'v{b + 1}', f'v{b + 2}', f'v{b + 3}'))
                out.append(dsw('ds_write_b64', f'v{aQw}', R('v', b, 2), (c & 1) * 12288 + qt * 1024 + t * 512))
        return out

    def body_K(self, u, reads, mf):
        _, c, i = u
        base = self.slot[u] * SLOT
        done = []
        for e in range(2):
            qrd = {}
            if i == 0:
                for qt in range(3):
                    qrd[qt] = self.read_frag(reads, 'b128', QF + (e * 3 + qt) * 4, aQr,
                                             [(c & 1) * 12288 + (e * 3 + qt) * 1024], ('q', c, e, qt))
            for kt in range(4):
                f = self.alloc()
                rs = self.read_frag(reads, 'b128', f, aK + e, [base + kt * 1024], ('k', c, i, e, kt))
                for qt in range(3):
                    m = self.mm(G(i, kt >> 1, qt) + 4 * (kt & 1), R('a', f, 4), ('k', c, i, e, kt),
                                R('a', QF + (e * 3 + qt) * 4, 4), ('q', c, e, qt), c == 0 and e == 0,
                                rs + qrd.get(qt, []))
                    mf.append(m)
        if c == 3:
            last = mf[-1]
            for j in range(2):
                for k in range(4):
                    for qt in range(3):
                        b = G(i, j, qt) + 2 * k
                        if i == 0 and j == 0 and k == 0:
                            v = valu('v_max_f32', f'v{vM + qt}', f'v{b}', f'v{b + 1}')
                        else:
                            v = valu('v_max3_f32', f'v{vM + qt}', f'v{vM + qt}', f'v{b}', f'v{b + 1}')
                        v.after = [last]
                        self.vq.append(v)

    def max_xlane_write(self):
        out = []
        for op in ('v_permlane32_swap_b32', 'v_permlane16_swap_b32'):
            for qt in range(3):
                out.append(valu('v_mov_b32', f'v{vT + qt}', f'v{vM + qt}'))
            for qt in range(3):
                out.append(valu(op, f'v{vT + qt}', f'v{vM + qt}'))
            for qt in range(3):
                out.append(valu('v_max_f32', f'v{vM + qt}', f'v{vM + qt}', f'v{vT + qt}'))
        out.append(dsw('ds_write_b128', f'v{aOw}', R('v', vM, 4)))
        return out

    def max_read_and_exp(self):
        head = [dsr('ds_read_b128', R('v', vT, 4), f'v{aOp}')]
        for k in range(4):
            head.append(valu('v_accvgpr_write_b32', f'a{ONES + k}', f'v{vST + 1}'))
            head[-1].tagw = ([f'a{ONES + k}'], 'ones')
        for qt in range(3):
            head.append(valu('v_max_f32', f'v{vM + qt}', f'v{vM + qt}', f'v{vT + qt}'))
        for qt in range(3):
            head.append(valu('v_mul_f32', f'v{vM + qt}', f's{sC}', f'v{vM + qt}'))
        self.prd = {}
        for i in range(4):
            for j in range(2):
                for qt in range(3):
                    b = G(i, j, qt)
                    for k in range(8):
                        self.vq.append(valu('v_fma_f32', f'v{b + k}', f'v{b + k}', f's{sC}', f'-v{vM + qt}'))
                    for k in range(8):
                        self.vq.append(valu('v_exp_f32', f'v{b + k}', f'v{b + k}'))
                    for k in range(4):
                        v = valu('v_cvt_pk_bf16_f32', f'v{b + k}', f'v{b + 2 * k}', f'v{b + 2 * k + 1}')
                        v.tagw = ([f'v{b + k}'], ('p', i, j, qt))
                        self.vq.append(v)
                    self.prd[(i, j, qt)] = self.vq[-1]
        return head

    def body_V(self, u, reads, mf):
        _, c, i = u
        base = self.slot[u] * SLOT
        for j in range(2):
            for t in range(4):
                f = self.alloc()
                rs = self.read_frag(reads, 'tr', f, aV + t, [base + 2 * j * 1024, base + (2 * j + 1) * 1024],
                                    ('v', c, i, j, t))
                for qt in range(3):
                    nd = list(rs)
                    if c == 0:
                        nd.append(self.prd[(i, j, qt)])
                        if i == 0:
                            nd.append(self.prd[(0, 1, 2)])
                    mf.append(self.mm(OACC(t, qt), R('a', f, 4), ('v', c, i, j, t),
                                      R('v', G(i, j, qt), 4), ('p', i, j, qt), i == 0 and j == 0, nd))
            if c == 0:
                for qt in range(3):
                    mf.append(self.mm(LACC(qt), R('a', ONES, 4), 'ones', R('v', G(i, j, qt), 4), ('p', i, j, qt),
                                      i == 0 and j == 0))

    def x1(self, c):
        out = []
        for t in (2, 3):
            for qt in range(3):
                out.append(dsw('ds_write_b128', f'v{aOw}', R('v', OACC(t, qt), 4), ((t - 2) * 3 + qt) * 1024))
        if c == 0:
            for qt in range(3):
                out.append(valu('v_mov_b32', f'v{vM + qt}', f'v{LACC(qt)}'))
            out.append(dsw('ds_write_b128', f'v{aOw}', R('v', vM, 4), 6144))
        return out

    def x2(self, c):
        out = []
        if c == 0:
            out.append(dsr('ds_read_b128', R('v', vT, 4), f'v{aOp}', 6144))
        for qt in range(3):
            for t in (0, 1):
                out.append(dsr('ds_read_b128', R('v', OACC(t + 2, qt), 4), f'v{aOp}', (t * 3 + qt) * 1024))
        if c == 0:
            for qt in range(3):
                out.append(valu('v_add_f32', f'v{vM + qt}', f'v{vM + qt}', f'v{vT + qt}'))
            for qt in range(3):
                out.append(valu('v_rcp_f32', f'v{vM + qt}', f'v{vM + qt}'))
        wr = []
        for qt in range(3):
            for t in (0, 1):
                a, b = OACC(t, qt), OACC(t + 2, qt)
                for k in range(4):
                    out.append(valu('v_add_f32', f'v{a + k}', f'v{a + k}', f'v{b + k}'))
                for k in range(4):
                    out.append(valu('v_mul_f32', f'v{a + k}', f'v{a + k}', f'v{vM + qt}'))
            a, b = OACC(0, qt), OACC(1, qt)
            out.append(valu('v_cvt_pk_bf16_f32', f'v{a}', f'v{a}', f'v{a + 1}'))
            out.append(valu('v_cvt_pk_bf16_f32', f'v{a + 1}', f'v{a + 2}', f'v{a + 3}'))
            out.append(valu('v_cvt_pk_bf16_f32', f'v{a + 2}', f'v{b}', f'v{b + 1}'))
            out.append(valu('v_cvt_pk_bf16_f32', f'v{a + 3}', f'v{b + 2}', f'v{b + 3}'))
            wr.append(dsw('ds_write_b128', f'v{aOp}', R('v', a, 4), qt * 1024))
        k = 0
        res = []
        for ins in out:
            res.append(ins)
            if ins.text.startswith('v_cvt'):
                k += 1
                if k % 4 == 0:
                    res.append(wr[k // 4 - 1])
        return res

    def of_reads(self, c, reads):
        self.ofrd = {}
        for ks in range(4):
            for qt in range(3):
                self.ofrd[(ks, qt)] = self.read_frag(reads, 'b128', OF + (ks * 3 + qt) * 4, aOr,
                                                     [(ks ^ 1) * OREG + qt * 1024], ('o', c, ks, qt))

    def outproj(self, c, lc, mf):
        for ks in range(4):
            for qt in range(3):
                mf.append(self.mm(OUTACC(lc, qt), R('a', WOF + (lc * 4 + ks) * 4, 4), ('wo', c, lc, ks),
                                  R('a', OF + (ks * 3 + qt) * 4, 4), ('o', c, ks, qt), c == 0 and ks == 0,
                                  self.ofrd[(ks, qt)]))

    def body_O(self, u, reads):
        _, c, lc = u
        base = self.slot[u] * SLOT
        for ks in range(4):
            self.read_frag(reads, 'tr', WOF + (lc * 4 + ks) * 4, aWO, [base + ks * 4096, base + ks * 4096 + 2048],
                           ('wo', c, lc, ks))

    def out_store(self, lc, after):
        a, b, d = OUTACC(lc, 0), OUTACC(lc, 1), OUTACC(lc, 2)
        fl = self.cfg['store_flags']
        out = [valu('v_cvt_pk_bf16_f32', f'v{a}', f'v{a}', f'v{a + 1}'),
               valu('v_cvt_pk_bf16_f32', f'v{a + 1}', f'v{a + 2}', f'v{a + 3}'),
               valu('v_cvt_pk_bf16_f32', f'v{a + 2}', f'v{b}', f'v{b + 1}'),
               valu('v_cvt_pk_bf16_f32', f'v{a + 3}', f'v{b + 2}', f'v{b + 3}'),
               valu('v_cvt_pk_bf16_f32', f'v{d}', f'v{d}', f'v{d + 1}'),
               valu('v_cvt_pk_bf16_f32', f'v{d + 1}', f'v{d + 2}', f'v{d + 3}'),
               salu('s_mul_i32', f's{sT0}', f's{sLC + lc}', 48),
               bstore('buffer_store_dwordx4', R('v', a, 4), f'v{vST}', srd(sWS), f's{sT0}', 0, fl),
               bstore('buffer_store_dwordx2', R('v', d, 2), f'v{vST + 1}', srd(sWS), f's{sT0}', 1024, fl)]
        out[0].after = [after]
        return out

    def finish(self, last):
        E = self.E
        e = E.emit
        z, one, q = f'v{vT}', f'v{vT + 1}', f'v{vT + 2}'
        e([valu('v_mov_b32', z, 0), valu('v_mov_b32', one, 1),
           salu('s_cmp_lg_u32', f's{sH}', 7)])
        E.line('    s_cbranch_scc1 L_own')
        e(self.out_store(6, last))
        E.label('L_own')
        lane, t = f'v{vM}', f'v{vM + 1}'
        e([valu('v_mbcnt_lo_u32_b32', lane, -1, 0), valu('v_mbcnt_hi_u32_b32', lane, -1, lane),
           valu('v_and_b32', q, 15, lane), valu('v_mul_u32_u24', q, 896, q),
           valu('v_lshrrev_b32', t, 4, lane), valu('v_lshl_add_u32', q, t, 3, q),
           salu('s_lshl_b32', f's{sT0}', f's{sWAVE}', 5), salu('s_lshl_b32', f's{sT1}', f's{sH}', 7),
           salu('s_add_u32', f's{sT0}', f's{sT0}', f's{sT1}'),
           valu('v_add_u32', q, f's{sT0}', q),
           salu('s_mul_i32', f's{sT0}', f's{sB}', 8 * 43008),
           salu('s_add_u32', f's{sX}', 's78', f's{sT0}'), salu('s_addc_u32', f's{sX + 1}', 's79', 0),
           salu('s_mov_b32', f's{sX + 2}', 8 * 43008),
           salu('s_mul_i32', f's{sT3}', f's{sH}', 6144),
           salu('s_lshl_b32', f's{sT2}', f's{sB}', 3)])
        for k in range(1, 8):
            e([salu('s_add_u32', f's{sT0}', f's{sH}', k), salu('s_and_b32', f's{sT0}', f's{sT0}', 7),
               salu('s_mul_i32', f's{sT0}', f's{sT0}', 43008), salu('s_add_u32', f's{sLC + k - 1}', f's{sT0}', f's{sT3}')])
        E.line('    s_waitcnt vmcnt(0)')
        E.vm_q = []
        E.barrier()
        self.stamp('pub')
        E.line(f'    s_cmp_lg_u32 s{sWAVE}, 0')
        E.line('    s_cbranch_scc1 L_join')
        E.line('    s_mov_b64 exec, 1')
        E.line(f'    buffer_store_byte {one}, {z}, {srd(sDBG)}, s2 offen sc1')
        E.line(f'    s_cmp_eq_u32 s{sH}, 7')
        E.line('    s_cbranch_scc1 L_nopoll')
        E.line(f'    s_mov_b32 s{sT1}, 0')
        E.label('L_poll')
        E.line(f'    buffer_load_dwordx2 v[{vM}:{vM + 1}], {z}, {srd(sDBG)}, s{sT2} offen sc1')
        E.line(f'    s_add_u32 s{sT1}, s{sT1}, 1')
        E.line('    s_waitcnt vmcnt(0)')
        E.line(f'    v_and_b32 v{vM}, v{vM}, v{vM + 1}')
        E.line(f'    s_cmp_gt_u32 s{sT1}, 0x80000')
        E.line('    s_cbranch_scc1 L_nopoll')
        E.line(f'    v_readfirstlane_b32 s{sT0}, v{vM}')
        E.line('    s_nop 1')
        E.line(f'    s_cmp_lg_u32 s{sT0}, 0x01010101')
        E.line('    s_cbranch_scc1 L_poll')
        E.label('L_nopoll')
        E.line('    s_mov_b64 exec, -1')
        E.label('L_join')
        E.barrier()
        self.stamp('got')
        E.line(f'    s_cmp_eq_u32 s{sH}, 7')
        E.line('    s_cbranch_scc1 L_fin')
        for k in range(7):
            e([bload('buffer_load_dwordx4', R('v', 16 * k, 4), f'v{vST}', srd(sX), f's{sLC + k}', 0, 'sc1'),
               bload('buffer_load_dwordx2', R('v', 16 * k + 8, 2), f'v{vST + 1}', srd(sX), f's{sLC + k}', 1024, 'sc1')])
        e([salu('s_mov_b32', f's{sT0}', 16 * 896), salu('s_mov_b32', f's{sT1}', 32 * 896)])
        for k in range(7):
            for d in range(6):
                s_ = f'v{16 * k + d if d < 4 else 16 * k + 4 + d}'
                a = OUTACC(6, d >> 1) + 2 * (d & 1)
                e([valu('v_lshlrev_b32', z, 16, s_), valu('v_and_b32', s_, '0xffff0000', s_),
                   valu('v_add_f32', f'v{a}', f'v{a}', z), valu('v_add_f32', f'v{a + 1}', f'v{a + 1}', s_)])
        for qt in range(3):
            a = OUTACC(6, qt)
            e([valu('v_cvt_pk_bf16_f32', f'v{a}', f'v{a}', f'v{a + 1}'),
               valu('v_cvt_pk_bf16_f32', f'v{a + 1}', f'v{a + 2}', f'v{a + 3}'),
               bstore('buffer_store_dwordx2', R('v', a, 2), q, srd(sOUT), (0, f's{sT0}', f's{sT1}')[qt])])
        E.label('L_fin')

    def force(self, ins, reads):
        for n in ins.needs:
            if n.emitted:
                continue
            q = reads if n in reads else self.vq
            assert n in q, (ins.text, n.text)
            while not n.emitted:
                self.E.emit(q.pop(0))

    def ready(self, q):
        return q and all(a.emitted for a in q[0].after)

    def step(self, name, ndma, mf=(), reads=None, head=(), tail=(), delta=6, vspine=0, nxt=(), free=(), barrier=True):
        E = self.E
        reads = reads if reads is not None else []
        allm = self.carry + list(mf)
        if delta and len(allm) >= delta:
            self.carry, allm = allm[len(allm) - delta:], allm[:len(allm) - delta]
        elif delta:
            self.carry, allm = allm, []
        else:
            self.carry = []
        spine = list(head) + allm + ([None] * vspine) + list(tail)
        total = sum(x.cost if x else 6 for x in spine) + 1
        acc = 0
        nd = 0

        def try_dma(final=False):
            nonlocal nd
            n = 0
            while nd < ndma and (final or nd * total <= acc * ndma):
                it = self.next_item()
                if it is None:
                    nd = ndma
                    break
                E.emit(it)
                n += len(it)
                nd += 1
                if not final:
                    break
            return n
        k = 0
        while k < 2 and self.ready(reads):
            E.emit(reads.pop(0))
            k += 1
        tailset = set(map(id, tail))
        first_tail = True
        for ins in spine:
            if ins is None:
                if not self.ready(self.vq):
                    continue
                ins = self.vq.pop(0)
                slots = 0.34
            else:
                slots = 2 if ins.kind == 'mfma' else 0
                if id(ins) in tailset and first_tail:
                    first_tail = False
                    if self.cfg.get('_flushvq'):
                        while self.vq:
                            E.emit(self.vq.pop(0))
                self.force(ins, reads)
            E.emit(ins)
            acc += ins.cost
            slots -= try_dma()
            if slots > 0 and slots < 1:
                self._frac = getattr(self, '_frac', 0) + slots
                slots = int(self._frac)
                self._frac -= slots
                while slots > 0 and self.ready(reads):
                    E.emit(reads.pop(0))
                    slots -= 1
                continue
            while slots > 0 and self.ready(reads):
                E.emit(reads.pop(0))
                slots -= 1
            while slots > 0 and self.ready(self.vq):
                v = self.vq.pop(0)
                E.emit(v)
                slots -= v.cost // 4
        while reads:
            assert self.ready(reads), (name, reads[0].text)
            E.emit(reads.pop(0))
        try_dma(True)
        for u in nxt:
            while u not in self.dmas or len(self.dmas[u]) < 4:
                it = self.next_item()
                assert it is not None, ('ring deadlock', name, u)
                E.emit(it)
        if barrier:
            need = [d for u in nxt for d in self.dmas[u]]
            E.wait_for_vm(need, lgkm=0)
            E.barrier()
        self.free += [self.slot[u] for u in free]
        self.stamp(name)

    def stamp(self, name):
        if name in self.cfg.get('stamps', ()):
            s = sSTAMP + 2 * self.nstamp
            self.E.line(f'    s_memrealtime s[{s}:{s + 1}]')
            self.E.line('    s_waitcnt lgkmcnt(0)')
            self.E.lds_q = []
            self.nstamp += 1
            self.stamp_names.append(name)

    def prologue(self):
        E = self.E
        e = E.emit
        E.line('    s_cmp_ge_u32 s2, 256')
        E.line('    s_cbranch_scc1 L_main_end')
        self.stamp('start')
        E.line('    s_load_dwordx8 s[64:71], s[0:1], 0')
        E.line('    s_load_dwordx8 s[72:79], s[0:1], 32')
        lane, row8, pos, par, t0, t1, t2, g, r, cp, key = (f'v{i}' for i in range(1, 12))
        w = 'v12'
        e([valu('v_lshrrev_b32', w, 6, 'v0'),
           valu('v_and_b32', lane, 63, 'v0'),
           valu('v_readfirstlane_b32', f's{sWAVE}', w),
           valu('v_lshrrev_b32', row8, 3, lane),
           valu('v_and_b32', pos, 7, lane),
           valu('v_and_b32', par, 1, w),
           salu('s_lshr_b32', f's{sB}', 's2', 3),
           salu('s_and_b32', f's{sH}', 's2', 7),
           salu('s_lshl_b32', f's{sWOFF}', f's{sWAVE}', 12)])
        e([valu('v_lshrrev_b32', t0, 1, row8),
           valu('v_lshl_or_b32', t0, par, 2, t0),
           valu('v_xor_b32', t0, t0, pos),
           valu('v_lshl_add_u32', t1, par, 3, row8),
           valu('v_lshrrev_b32', t2, 1, w),
           valu('v_mul_u32_u24', f'v{vX}', 896, t1),
           valu('v_lshl_add_u32', f'v{vX}', t2, 9, f'v{vX}'),
           valu('v_lshl_add_u32', f'v{vX}', t0, 4, f'v{vX}'),
           valu('v_lshl_add_u32', f'v{vK}', w, 5, row8),
           valu('v_lshlrev_b32', f'v{vV}', 9, f'v{vK}'),
           valu('v_lshl_add_u32', f'v{vK}', t0, 4, f'v{vV}'),
           valu('v_and_b32', t0, 2, row8),
           valu('v_lshl_or_b32', t0, par, 2, t0),
           valu('v_xor_b32', t0, t0, pos),
           valu('v_lshlrev_b32', f'v{vWQ}', 13, t1),
           valu('v_lshl_add_u32', f'v{vWQ}', t2, 9, f'v{vWQ}'),
           valu('v_lshl_add_u32', f'v{vWQ}', t0, 4, f'v{vWQ}')])
        for j in range(1, 4):
            e([salu('s_mov_b32', f's{sKV1 + j - 1}', (4096 - 1024) * j),
               salu('s_mov_b32', f's{sWQ1 + j - 1}', (131072 - 1024) * j),
               salu('s_mov_b32', f's{sWO1 + j - 1}', (7168 - 1024) * j)])
        for n in (sX, sK, sV, sWQ, sWO, sWS, sOUT):
            e(salu('s_mov_b32', f's{n + 3}', '0x20000'))
        e([salu('s_mov_b32', f's{sX + 2}', 43008),
           salu('s_mov_b32', f's{sK + 2}', 262144),
           salu('s_mov_b32', f's{sV + 2}', 262144),
           salu('s_mov_b32', f's{sWQ + 2}', 447 * 8192 + 1024),
           salu('s_mov_b32', f's{sWO + 2}', 512 * 896),
           salu('s_mov_b32', f's{sWS + 2}', 43008),
           salu('s_mov_b32', f's{sOUT + 2}', 43008),
           salu('s_mul_i32', f's{sT0}', f's{sB}', 43008),
           salu('s_lshl_b32', f's{sT1}', 's2', 18),
           salu('s_lshl_b32', f's{sT2}', f's{sH}', 10),
           salu('s_mul_i32', f's{sT3}', f's{sH}', 512 * 896)])
        E.line('    s_waitcnt lgkmcnt(0)')
        for n, p, o in ((sX, 64, sT0), (sWQ, 70, sT2), (sK, 66, sT1), (sV, 68, sT1), (sWO, 72, sT3), (sOUT, 74, sT0)):
            e([salu('s_add_u32', f's{n}', f's{p}', f's{o}'), salu('s_addc_u32', f's{n + 1}', f's{p + 1}', 0)])
        self._pro = (lane, row8, pos, par, t0, t1, t2, g, r, cp, key, w)

    def prewarm_code(self, which):
        t, u = f'v{vT + 3}', f'v{vM + 3}'
        out = [valu('v_mbcnt_lo_u32_b32', t, -1, 0), valu('v_mbcnt_hi_u32_b32', t, -1, t),
               valu('v_and_b32', t, 31, t), valu('v_min_u32', t, 27, t),
               salu('s_mul_i32', f's{sT0}', f's{sWAVE}', 28),
               salu('s_mul_i32', f's{sT1}', f's{sB}', 112),
               salu('s_add_u32', f's{sT0}', f's{sT0}', f's{sT1}'),
               valu('v_add_u32', t, f's{sT0}', t)]
        if which == 'W':
            out += [valu('v_lshrrev_b32', u, 3, t), valu('v_and_b32', t, 7, t), valu('v_lshlrev_b32', t, 7, t),
                    valu('v_lshl_add_u32', t, u, 13, t),
                    bload('buffer_load_dword', u, t, srd(sWQ), 0, 0, self.cfg['flags']['P'])]
        else:
            out += [valu('v_lshlrev_b32', t, 7, t),
                    bload('buffer_load_dword', u, t, srd(sWO), 0, 0, self.cfg['flags']['P'])]
        return out

    def prewarm(self, u):
        return self.prewarm_code(u[1])

    def prologue2(self):
        lane, row8, pos, par, t0, t1, t2, g, r, cp, key, w = self._pro
        e = self.E.emit
        r16 = 'v13'
        e([
           valu('v_and_b32', t0, 6, row8),
           valu('v_xor_b32', t0, t0, pos),
           valu('v_lshl_add_u32', f'v{vV}', t0, 4, f'v{vV}'),
           valu('v_lshl_add_u32', t1, par, 5, row8),
           valu('v_lshl_add_u32', t1, t2, 8, t1),
           valu('v_mul_u32_u24', f'v{vWO}', 896, t1),
           valu('v_lshl_add_u32', f'v{vWO}', t0, 4, f'v{vWO}'),
           valu('v_lshrrev_b32', g, 4, lane),
           valu('v_and_b32', r16, 15, lane),
           valu('v_bfe_u32', r, lane, 2, 2),
           valu('v_and_b32', cp, 3, lane),
           valu('v_lshrrev_b32', t0, 1, r16),
           valu('v_xor_b32', t0, t0, g),
           valu('v_lshlrev_b32', t0, 4, t0),
           valu('v_and_b32', t1, 7, r16),
           valu('v_lshl_add_u32', t0, t1, 7, t0),
           valu('v_lshrrev_b32', t1, 3, r16),
           valu('v_lshl_add_u32', f'v{aX}', t1, 12, t0),
           valu('v_xor_b32', f'v{aX + 1}', 64, f'v{aX}'),
           valu('v_lshl_add_u32', f'v{aK}', par, 13, f'v{aX}'),
           valu('v_xor_b32', f'v{aK + 1}', 64, f'v{aK}'),
           valu('v_and_b32', t1, 1, g),
           valu('v_lshrrev_b32', key, 1, r),
           valu('v_lshl_or_b32', key, t1, 1, key),
           valu('v_lshrrev_b32', g, 1, g),
           valu('v_lshlrev_b32', t0, 1, par),
           valu('v_xor_b32', t0, t0, key),
           valu('v_lshlrev_b32', t0, 5, t0),
           valu('v_lshl_add_u32', t0, cp, 3, t0),
           valu('v_lshl_add_u32', t0, r, 7, t0),
           valu('v_lshl_add_u32', f'v{aWQ}', g, 10, t0),
           valu('v_lshl_add_u32', f'v{aWQ}', t1, 12, f'v{aWQ}'),
           valu('v_lshl_add_u32', f'v{aWQ}', t2, 13, f'v{aWQ}'),
           valu('v_xor_b32', f'v{aWQ + 1}', 32, f'v{aWQ}'),
           valu('v_lshl_add_u32', t0, t1, 9, t0),
           valu('v_lshl_add_u32', f'v{aV}', g, 12, t0),
           valu('v_lshl_add_u32', f'v{aV}', par, 13, f'v{aV}'),
           valu('v_xor_b32', f'v{aV + 1}', 32, f'v{aV}'),
           valu('v_xor_b32', f'v{aV + 2}', 64, f'v{aV}'),
           valu('v_xor_b32', f'v{aV + 3}', 96, f'v{aV}'),
           valu('v_xor_b32', t0, w, key),
           valu('v_lshlrev_b32', t0, 5, t0),
           valu('v_lshl_add_u32', t0, cp, 3, t0),
           valu('v_lshl_add_u32', t0, r, 7, t0),
           valu('v_lshl_add_u32', t0, t1, 9, t0),
           valu('v_lshl_add_u32', f'v{aWO}', g, 10, t0),
           valu('v_lshlrev_b32', t0, 4, lane),
           valu('v_add_u32', f'v{aOr}', EX, t0),
           valu('v_mul_u32_u24', f'v{aQr}', 6144, t2),
           valu('v_add_u32', f'v{aQr}', f'v{aQr}', f'v{aOr}'),
           valu('v_mul_u32_u24', f'v{aOw}', OREG, w),
           valu('v_add_u32', f'v{aOw}', f'v{aOw}', f'v{aOr}'),
           valu('v_xor_b32', f'v{aOp}', 1, w),
           valu('v_mul_u32_u24', f'v{aOp}', OREG, f'v{aOp}'),
           valu('v_add_u32', f'v{aOp}', f'v{aOp}', f'v{aOr}'),
           valu('v_mul_u32_u24', f'v{aQw}', 3072, w),
           valu('v_lshl_add_u32', f'v{aQw}', g, 8, f'v{aQw}'),
           valu('v_lshl_add_u32', f'v{aQw}', r16, 4, f'v{aQw}'),
           valu('v_lshl_add_u32', f'v{aQw}', t1, 3, f'v{aQw}'),
           valu('v_add_u32', f'v{aQw}', EX, f'v{aQw}'),
           valu('v_mul_u32_u24', f'v{vST}', 1536, w),
           valu('v_add_u32', f'v{vST}', f'v{vST}', t0),
           valu('v_mov_b32', f'v{vST + 1}', '0x3f803f80'),
           salu('s_mov_b32', f's{sC}', fbits(1.4426950408889634 / 16.0)),
           salu('s_mul_i32', f's{sT0}', 's2', 43008),
           salu('s_add_u32', f's{sWS}', 's78', f's{sT0}'),
           salu('s_addc_u32', f's{sWS + 1}', 's79', 0),
           salu('s_mov_b32', f's{sDBG}', 's76'), salu('s_mov_b32', f's{sDBG + 1}', 's77'),
           salu('s_mov_b32', f's{sDBG + 2}', 256), salu('s_mov_b32', f's{sDBG + 3}', '0x20000')])
        prev = sT0
        e(salu('s_lshl_b32', f's{sT0}', f's{sH}', 7))
        for i in range(7):
            e([salu('s_add_u32', f's{sLC + i}', f's{prev}', 128),
               salu('s_sub_u32', f's{sT1}', f's{sLC + i}', 896),
               salu('s_cselect_b32', f's{sLC + i}', f's{sLC + i}', f's{sT1}')])
            prev = sLC + i

    def main(self):
        cfg = self.cfg
        E = self.E
        order = []
        order += [('P', 'W')] if cfg['prewarm'] else []
        order += [('X', q) for q in range(3)]
        for c in range(4):
            order += [('W', c, i) for i in range(7)]
            if c == 1 and cfg['prewarm']:
                order += [('P', 'O')]
            order += [('K', c, i) for i in range(4)]
        for c in range(4):
            order += [('O', c, i) for i in range(7)] + [('V', c, i) for i in range(4)]
        self.fifo = [(u, j) for u in order for j in range(1 if u[0] == 'P' else 4)]
        pos = {}
        for n, (u, j) in enumerate(self.fifo):
            pos[u] = n + 1
        wg = ((0, 1), (2, 3), (4, 5), (6,))
        S = [('x', [('X', 0), ('X', 1), ('X', 2)])]
        for c in range(4):
            S += [(f'w{c}{n}', [('W', c, i) for i in gr]) for n, gr in enumerate(wg)]
            S += [(f'k{c}{i}', [('K', c, i)]) for i in range(4)]
        for c in range(4):
            if c:
                S += [(f'xb{c - 1}', [])]
            S += [(f'o{c}{n}', [('O', c, i) for i in gr]) for n, gr in enumerate(wg)]
            S += [(f'v{c}{i}', [('V', c, i)]) for i in range(4)]
        S += [('xb3', []), ('fin', [])]
        lead = cfg['lead']

        def target(n):
            need = max([0] + [pos[u] for _, us in S[:n + 2] for u in us])
            l = lead(S[n][0]) if callable(lead) else lead
            return max(0, need + l - self.issued)

        self.prologue()
        first = max(pos[u] for u in S[0][1]) + cfg['lead0']
        k = 0
        while self.issued < first:
            E.emit(self.next_item())
            k += 1
            if k == cfg.get('pro2_at', 6):
                self.prologue2()
        E.wait_for_vm([d for u in S[0][1] for d in self.dmas[u]])
        E.barrier()
        self.stamp('pro')
        self.xrd = {}
        for n, (name, us) in enumerate(S):
            nxt = S[n + 1][1] if n + 1 < len(S) else []
            nd = target(n)
            reads, mf = [], []
            kw = dict(nxt=nxt, free=us)
            t = name[0]
            if name == 'x':
                self.body_X(reads, range(14))
                self.step(name, nd, head=list(reads), delta=0, **kw)
            elif t == 'w':
                c = int(name[1])
                for u in us:
                    self.body_W(u, reads, mf)
                if name[2] == '3':
                    self.step(name, nd, mf, reads, tail=self.q_write(c), delta=0, **kw)
                else:
                    self.step(name, nd, mf, reads, **kw)
            elif t == 'k':
                self.body_K(us[0], reads, mf)
                if name == 'k33':
                    cfg['_flushvq'] = True
                    self.step(name, nd, mf, reads, tail=self.max_xlane_write(), delta=0, **kw)
                    cfg['_flushvq'] = False
                else:
                    self.step(name, nd, mf, reads, **kw)
            elif t == 'o':
                c, g = int(name[1]), int(name[2])
                if c == 0:
                    head = self.max_read_and_exp() if g == 0 else []
                    for u in us:
                        self.body_O(u, reads)
                    self.step(name, nd, [], reads, head=head, vspine=cfg['vspine'] * len(us), delta=0, **kw)
                else:
                    if g == 0:
                        self.of_reads(c - 1, reads)
                    lcs = ((0, 1, 2), (3, 4), (5, 6), ())[g]
                    for lc in lcs:
                        self.outproj(c - 1, lc, mf)
                    for u in us:
                        self.body_O(u, reads)
                    self.step(name, nd, mf, reads, delta=(0 if g == 3 else 6), **kw)
            elif t == 'v':
                c = int(name[1])
                self.body_V(us[0], reads, mf)
                if name[2] == '3':
                    self.step(name, nd, mf, reads, tail=self.x1(c), delta=0, **kw)
                else:
                    self.step(name, nd, mf, reads, **kw)
            elif t == 'x':
                self.step(name, nd, head=self.x2(int(name[2])), delta=0, **kw)
            elif name == 'fin':
                self.of_reads(3, reads)
                E.emit([valu('v_mbcnt_lo_u32_b32', f'v{vT}', -1, 0), valu('v_mbcnt_hi_u32_b32', f'v{vT}', -1, f'v{vT}'),
                        valu('v_lshlrev_b32', f'v{vT}', 3, f'v{vT}'),
                        valu('v_sub_u32', f'v{vST + 1}', f'v{vST}', f'v{vT}')])
                for lc in range(7):
                    self.outproj(3, lc, mf)
                for lc in range(6):
                    self.vq += self.out_store(lc, mf[lc * 12 + 11 + 3])
                self.step(name, 0, mf, reads, delta=0, barrier=False)
                while self.vq:
                    E.emit(self.vq.pop(0))
                self.finish(mf[-1])
        assert not self.fifo and not self.carry
        if self.nstamp:
            E.line('    s_waitcnt vmcnt(0)')
            self.cfg['stamps'] = list(self.cfg['stamps']) + ['end']
            self.stamp('end')
            E.line(f'    s_lshl_b32 s{sT0}, s2, 10')
            E.line(f'    s_lshl_b32 s{sT1}, s{sWAVE}, 8')
            E.line(f'    s_add_u32 s{sT0}, s{sT0}, s{sT1}')
            E.line(f'    s_add_u32 s{sT0}, s{sT0}, {STAMP_OFF}')
            E.line(f'    s_mov_b32 s{sWS}, s78\n    s_mov_b32 s{sWS + 1}, s79\n    s_mov_b32 s{sWS + 2}, 0x10000000')
            E.line(f'    v_mov_b32 v2, s{sT0}')
            for k in range(self.nstamp):
                E.line(f'    v_mov_b32 v0, s{sSTAMP + 2 * k}\n    v_mov_b32 v1, s{sSTAMP + 2 * k + 1}')
                E.line(f'    buffer_store_dwordx2 v[0:1], v2, {srd(sWS)}, 0 offen offset:{8 * k}\n    s_nop 1')
        E.label('L_main_end')
        E.line('    s_endpgm')
        return E.text()


def kd(name, vgpr, accum):
    return f'''.amdhsa_kernel {name}
  .amdhsa_next_free_vgpr {vgpr}
  .amdhsa_next_free_sgpr 102
  .amdhsa_accum_offset {accum}
  .amdhsa_group_segment_fixed_size 0
  .amdhsa_kernarg_size 64
  .amdhsa_user_sgpr_count 2
  .amdhsa_user_sgpr_kernarg_segment_ptr 1
  .amdhsa_system_sgpr_workgroup_id_x 1
  .amdhsa_float_denorm_mode_32 3
.end_amdhsa_kernel
'''


DEFAULT = dict(flags=dict(K='nt', V='nt', W='', O='', X='', P=''), store_flags='sc1', prewarm=True,
               lead=10, lead0=10, vspine=50, stamps=())


def build(**over):
    cfg = dict(DEFAULT)
    cfg.update(over)
    g = Gen(cfg)
    body = g.main()
    k1 = NAME + '_kernel'
    out = [f'; fused GQA block: q-projection, attention and output projection per (batch, kv head); generated file',
           f'; @launch grid=(256,1,1) block=(256,1,1) lds={LDS_BYTES}',
           '.amdgcn_target "amdgcn-amd-amdhsa--gfx950"', '.text',
           f'.globl {k1}', '.p2align 8', f'.type {k1},@function', f'{k1}:', body,
           '.section .rodata,"a"', '.p2align 6', kd(k1, 512, 256)]
    return '\n'.join(out), g


if __name__ == '__main__':
    txt, g = build()
    path = sys.argv[1] if len(sys.argv) > 1 else f'cdna_kernels/{NAME}.s'
    open(path, 'w').write(txt)
    print('written', path, 'est cost', g.E.cost, 'nops', g.E.nops, g.E.count)
```
